```python
import torch

def _softmax(x, axis=-1):
    return torch.softmax(x, dim=axis)
def _gelu(x):
    return torch.nn.functional.gelu(x, approximate="tanh")
def _silu(x):
    return torch.nn.functional.silu(x)
def _sigmoid(x):
    return torch.sigmoid(x)
def _layernorm(x, axis=-1, eps=1e-5):
    m = x.mean(dim=axis, keepdim=True)
    v = x.var(dim=axis, keepdim=True, unbiased=False)
    return (x - m) / torch.sqrt(v + eps)
def _scatter_add(tgt, idx, src, axis=0):
    return tgt.clone().index_add_(axis, idx, src)
def _segment_sum(src, seg, n):
    out = torch.zeros((n,) + src.shape[1:], dtype=src.dtype)
    return out.index_add_(0, seg, src)
def _pad(x, pw):
    flat = tuple(v for pair in reversed(pw) for v in pair)
    return torch.nn.functional.pad(x, flat)

kernel_name = 'parallel_sum__gqa_block_cached__glu_gated_glu__decode'

def setup_inputs():

    _w = (lambda a: (lambda t: t.to(torch.bfloat16) if t.is_floating_point() else t)(torch.as_tensor(a)))
    def _A_setup():
        B, Sq, D = 1, 1, 576
        Hq, Hkv, Sk, Dh = 32, 16, 65536, 128
        assert Hq % Hkv == 0, (Hq, Hkv)
        return {
            "x": _w((lambda *s: torch.randn(*s, dtype=torch.bfloat16) * 0.05)(B, Sq, D)),
            "k_cache": _w((lambda *s: torch.randn(*s, dtype=torch.bfloat16) * 3.2)(B, Hkv, Sk, Dh)),
            "v_cache": _w((lambda *s: torch.randn(*s, dtype=torch.bfloat16) * 1.6)(B, Hkv, Sk, Dh)),
            "wq": _w((lambda *s: torch.randn(*s, dtype=torch.bfloat16) * 3.2)(D, Hq * Dh) * (D ** -0.5)),
            "wo": _w((lambda *s: torch.randn(*s, dtype=torch.bfloat16) * 1.6)(Hq * Dh, D) * ((Hq * Dh) ** -0.5)),
        }
    _A_in = _A_setup()

    def _B_setup():
        B, S, D, F = 1, 1, 576, 4608
        return {
            "x": _w((lambda *s: torch.randn(*s, dtype=torch.bfloat16) * 0.05)(B, S, D)),
            "w_gate": _w((lambda *s: torch.randn(*s, dtype=torch.bfloat16) * 0.1)(D, F)),
            "w_up": _w((lambda *s: torch.randn(*s, dtype=torch.bfloat16) * 0.05)(D, F)),
            "w_down": _w((lambda *s: torch.randn(*s, dtype=torch.bfloat16) * 0.05)(F, D)),
        }
    _B_in = _B_setup()

    return {
        "A_x": _A_in["x"],
        "A_k_cache": _A_in["k_cache"],
        "A_v_cache": _A_in["v_cache"],
        "A_wq": _A_in["wq"],
        "A_wo": _A_in["wo"],
        "B_x": _B_in["x"],
        "B_w_gate": _B_in["w_gate"],
        "B_w_up": _B_in["w_up"],
        "B_w_down": _B_in["w_down"],
    }

def reference(A_x, A_k_cache, A_v_cache, A_wq, A_wo, B_x, B_w_gate, B_w_up, B_w_down):
    def _A_ref(x, k_cache, v_cache, wq, wo):
        B, Sq, D = x.shape
        Hq, Dh = 32, 128
        Hkv = k_cache.shape[1]
        rep = Hq // Hkv
        q = (lambda x, *d: x.permute(*d))((x @ wq).reshape(B, Sq, Hq, Dh), 0, 2, 1, 3)
        k = (lambda x, n, axis: torch.repeat_interleave(x, n, dim=axis))(k_cache, rep, axis=1)
        v = (lambda x, n, axis: torch.repeat_interleave(x, n, dim=axis))(v_cache, rep, axis=1)
        scores = torch.einsum("bhqd,bhkd->bhqk", q, k) * (Dh ** -0.5)
        p = _softmax(scores, axis=-1)
        o = torch.einsum("bhqk,bhkd->bhqd", p, v)
        return (lambda x, *d: x.permute(*d))(o, 0, 2, 1, 3).reshape(B, Sq, Hq * Dh) @ wo

    def _B_ref(x, w_gate, w_up, w_down):
        g = torch.einsum("bsd,df->bsf", x, w_gate)
        u = torch.einsum("bsd,df->bsf", x, w_up)
        h = _sigmoid(g) * u
        return torch.einsum("bsf,fd->bsd", h, w_down)

    x = A_x
    xn = _layernorm(x, axis=-1)
    return x + _A_ref(xn, A_k_cache, A_v_cache, A_wq, A_wo) + _B_ref(xn, B_w_gate, B_w_up, B_w_down)
```

```python
import re
TRANS = ("v_exp_f32","v_log_f32","v_rcp_f32","v_rsq_f32","v_sqrt_f32","v_sin_f32","v_cos_f32")
def regs(tok):
    tok=tok.strip()
    tok=tok.lstrip('-')
    if tok.startswith('abs(') : tok=tok[4:-1]
    if tok.startswith('|'): tok=tok.strip('|')
    m=re.fullmatch(r'([vsa])\[(\d+):(\d+)\]',tok)
    if m: return {f"{m.group(1)}{i}" for i in range(int(m.group(2)),int(m.group(3))+1)}
    m=re.fullmatch(r'([vsa])(\d+)',tok)
    if m: return {tok}
    if tok=="vcc": return {"vcc"}
    if tok=="exec": return {"exec"}
    if tok=="m0": return {"m0"}
    return set()
class Ins:
    def __init__(s,text):
        s.text=text
        t=text.split(';')[0].strip()
        s.label = t.endswith(':')
        s.directive = t.startswith('.') and not s.label
        s.op=None; s.w=set(); s.r=set(); s.kind=None; s.srcC=set(); s.dpp=False; s.states=1
        if s.label or s.directive or not t:
            s.states=0; return
        parts=t.split(None,1); s.op=parts[0]
        rest=parts[1] if len(parts)>1 else ""
        ops=[x.strip() for x in re.split(r',(?![^\[]*\])',rest)] if rest else []
        if ops:
            last=ops[-1].split()
            mods=last[1:]; ops[-1]=last[0] if last else ""
        else: mods=[]
        s.mods=mods
        op=s.op
        if op=="s_nop": s.kind="nop"; s.states=int(ops[0])+1; return
        if op.startswith("v_mfma"):
            s.kind="mfma"; s.w=regs(ops[0]); s.ab=regs(ops[1])|regs(ops[2]); s.srcC=regs(ops[3]); s.r=s.ab|s.srcC; return
        if op.startswith("v_"):
            s.kind="valu"
            s.dpp = "_dpp" in op or any(m.startswith(("row_","quad_perm","wave_")) for m in mods)
            if op.startswith("v_permlane"):
                s.w=regs(ops[0])|regs(ops[1]); s.r=set(s.w); s.kind="permlane"; return
            if op.startswith(("v_readfirstlane","v_readlane")):
                s.kind="readlane"; s.w=regs(ops[0]); s.r=set().union(*[regs(o) for o in ops[1:]]); return
            nd=1
            if op.startswith(("v_add_co","v_addc_co","v_sub_co","v_subb_co","v_div_scale","v_mad_u64")): nd=2
            s.w=set().union(*[regs(o) for o in ops[:nd]]); s.r=set().union(*[regs(o) for o in ops[nd:]]) if len(ops)>nd else set()
            if op.startswith(("v_fmac","v_dot2c","v_pk_fmac")) or s.dpp: s.r|=regs(ops[0])
            if op.startswith("v_cmpx"): s.w|={"exec"}
            if op.split("_e")[0] in TRANS or op in TRANS: s.trans=True
            return
        if op.startswith(("buffer_","global_","flat_")):
            s.kind="vmem"
            allr=[regs(o) for o in ops]
            if "load" in op and "lds" not in mods:
                s.w=allr[0]; s.r=set().union(*allr[1:])
            elif "atomic" in op and "sc0" in mods:
                s.w=allr[0]; s.r=set().union(*allr)
            else:
                s.r=set().union(*allr)
                if "store" in op and ("x4" in op or "x3" in op):
                    s.widestore = allr[0] if op.startswith("buffer_") else allr[1]
            return
        if op.startswith("ds_"):
            s.kind="ds"
            allr=[regs(o) for o in ops]
            if op.startswith(("ds_read","ds_bpermute","ds_permute","ds_swizzle")) or "_rtn" in op:
                s.w=allr[0]; s.r=set().union(*allr[1:])
            else: s.r=set().union(*allr)
            return
        s.kind="salu"
        if op.startswith(("s_cmp","s_cbranch","s_branch","s_waitcnt","s_barrier","s_endpgm","s_sleep","s_setprio","s_bitcmp")):
            s.r=set().union(*[regs(o) for o in ops]) if ops else set()
        else:
            s.w=regs(ops[0]) if ops else set(); s.r=set().union(*[regs(o) for o in ops[1:]]) if len(ops)>1 else set()
            if "saveexec" in op: s.w|={"exec"}
def isv(r): return r[0] in "va" and r!="vcc"
def need(p,c):
    n=0
    valu_p = p.kind in ("valu","permlane","readlane")
    valu_c = c.kind in ("valu","permlane","readlane")
    pv={r for r in p.w if isv(r)}; ps={r for r in p.w if not isv(r)}
    if valu_p:
        if c.kind=="mfma" and pv&c.r: n=max(n,2)
        if c.kind=="valu" and c.dpp and pv&c.r: n=max(n,2)
        if c.kind=="permlane" and pv&c.r: n=max(n,2)
        if c.kind=="readlane" and pv&c.r: n=max(n,1)
        if getattr(p,"trans",False) and (valu_c or c.kind=="mfma") and pv&c.r and not getattr(c,"trans",False): n=max(n,1)
        if valu_c and ps&c.r: n=max(n,2)
        if c.kind=="readlane" and ps&c.r: n=max(n,4)
        if c.kind=="vmem" and ps&c.r: n=max(n,5)
        if c.kind=="salu" and ps&c.r and not c.op.startswith("s_cbranch"): n=max(n,2)
        if "exec" in ps and (valu_c or c.kind=="mfma"): n=max(n,5)
    if p.kind=="mfma":
        big = "32x32" in p.op
        full = 12 if big else 8
        if c.kind=="mfma":
            if p.w&c.ab: n=max(n,full)
            if p.w&c.srcC and p.w!=c.srcC: n=max(n,full-2)
            if p.w&c.w and not (p.w&c.srcC): n=max(n,0)
        elif (valu_c or c.kind in("vmem","ds")) and (p.w&(c.r|c.w)): n=max(n,full)
        if valu_c and (p.srcC&c.w): n=max(n,7 if big else 3)
    if p.kind=="vmem" and hasattr(p,"widestore") and (p.widestore & c.w):
        n=max(n,2)
    if p.kind=="salu" and "m0" in p.w and c.kind=="vmem" and "lds" in getattr(c,"mods",[]): n=max(n,1)
    return n
def fix(lines, verbose=False):
    out=[]; hist=[]; added=0
    for t in lines:
        i=Ins(t)
        if i.states==0:
            out.append(t); continue
        req=0; dist=0
        for p in reversed(hist[-24:]):
            k=need(p,i)
            if k-dist>req: req=k-dist
            dist+=p.states
            if dist>=20: break
        if req>0:
            nop=Ins(f"s_nop {req-1}")
            out.append(f"s_nop {req-1}"); hist.append(nop); added+=1
        out.append(t); hist.append(i)
        if i.op in ("s_branch","s_endpgm"): hist=[]
    return out
class Asm:
    def __init__(s): s.l=[]
    def __call__(s,text):
        for x in text.split('\n'):
            x=x.strip()
            if x: s.l.append(x)
    def text(s):
        o=[]
        for x in fix(s.l):
            o.append(x if (x.endswith(':') or x.startswith('.')) else "    "+x)
        return "\n".join(o)+"\n"
```

```python
import sys, struct
from asmlib import Asm
NAME="parallel_sum__gqa_block_cached__glu_gated_glu__decode"
def f32(x): return "0x%08x"%struct.unpack("<I",struct.pack("<f",x))[0]
HDR=open("cdna_kernels/%s.s.ref"%NAME).read().split("; Override launch")[0]

def build(R=4, C=2, NS=24, PROF=False, KPOL="nt", WPOL="nt", SLEEP1=4, SLEEPG=32):
    A=Asm()
    LIM=1<<24
    CTR=0x0; QP=0x10000; ML=0x20000; P1=0x100000; P2=0x200000; PG=0x300000; PR=0x400000; WSZ=0x500000
    L_XN=0; L_Q=2304; L_H=2816
    TO=400000
    LOG2E=1.4426950408889634
    uid=[0]
    def lab(p):
        uid[0]+=1; return f"L_{p}{uid[0]}"
    def srd(d, base, size, add=None):
        if add is None:
            A(f"s_mov_b32 s{d}, s{base}\ns_mov_b32 s{d+1}, s{base+1}")
        else:
            A(f"s_add_u32 s{d}, s{base}, {add}\ns_addc_u32 s{d+1}, s{base+1}, 0")
        A(f"s_mov_b32 s{d+2}, {size}\ns_mov_b32 s{d+3}, 0x20000")
    def masks():
        A("""v_and_b32 v10, 1, v1
             v_lshlrev_b32 v10, 4, v10
             v_mov_b32 v11, 0xffff
             v_lshlrev_b32 v11, v10, v11
             v_bfe_u32 v10, v1, 1, 2""")
        for k in range(4):
            A(f"v_cmp_eq_u32 vcc, {k}, v10\nv_cndmask_b32 v{14+k}, 0, v11, vcc")
    def stamp(k):
        if not PROF: return
        A(f"""s_memrealtime s[90:91]
              s_waitcnt lgkmcnt(0)
              s_mov_b64 s[92:93], exec
              s_mov_b64 exec, 1
              v_mov_b32 v252, s90
              v_mov_b32 v253, s91
              s_lshl_b32 s94, s2, 9
              s_lshl_b32 s95, s3, 6
              s_add_u32 s94, s94, s95
              s_add_u32 s94, s94, {PR+k*8}
              v_mov_b32 v254, s94
              buffer_store_dwordx2 v[252:253], v254, s[40:43], 0 offen
              s_mov_b64 exec, s[92:93]""")
    def rne(dst, src):
        A(f"v_cvt_pk_bf16_f32 {dst}, {src}, {src}\nv_and_b32 {dst}, 0xffff0000, {dst}")
    def bset(k, src):
        for n in range(4): A(f"v_and_b32 v{32+4*k+n}, {src}, v{14+n}")
    def B(k): return f"v[{32+4*k}:{35+4*k}]"
    def q4(r): return f"v[{r}:{r+3}]"
    def rowsum(vs, op="add"):
        for rot in (8,4,2,1):
            for v in vs: A(f"v_{op}_f32_dpp {v}, {v}, {v} row_ror:{rot} row_mask:0xf bank_mask:0xf")
    def wavesum_last_row(vs):
        rowsum(vs)
        for v in vs: A(f"v_add_f32_dpp {v}, {v}, {v} row_bcast:15 row_mask:0xa bank_mask:0xf")
        for v in vs: A(f"v_add_f32_dpp {v}, {v}, {v} row_bcast:31 row_mask:0xc bank_mask:0xf")
    def poll(loads, regs, sleep, tmp="v10"):
        L=lab("poll"); D=lab("polld")
        A(f"s_mov_b32 s76, {TO}\n{L}:")
        loads()
        A("s_waitcnt vmcnt(0)")
        rs=list(regs)
        A(f"v_max3_u32 {tmp}, {rs[0]}, {rs[1]}, {rs[2]}")
        rs=rs[3:]
        while rs:
            if len(rs)>=2: A(f"v_max3_u32 {tmp}, {tmp}, {rs[0]}, {rs[1]}"); rs=rs[2:]
            else: A(f"v_max_u32 {tmp}, {tmp}, {rs[0]}"); rs=rs[1:]
        A(f"""v_cmp_eq_u32 vcc, -1, {tmp}
              s_cbranch_vccz {D}
              s_sub_u32 s76, s76, 1
              s_cbranch_scc1 {D}""")
        if sleep: A(f"s_sleep {sleep}")
        A(f"s_branch {L}\n{D}:")
    def pollflags(nl, base_s):
        L=lab("pf"); D=lab("pfd")
        A(f"""s_mov_b64 exec, {(1<<nl)-1}
              s_mov_b32 s76, {TO}
              {L}:
              buffer_load_dword v10, v13, s[44:47], 0 offen sc1
              s_waitcnt vmcnt(0)
              v_cmp_gt_u32 vcc, 16, v10
              s_cbranch_vccz {D}
              s_sub_u32 s76, s76, 1
              s_cbranch_scc1 {D}
              s_sleep 2
              s_branch {L}
              {D}:
              s_mov_b64 exec, -1""")
    def merge_halves(d):
        for v in range(4): A(f"v_mov_b32_dpp v{d+v}, v{d+v} row_ror:8 row_mask:0xc bank_mask:0xf")
        for v in range(4): A(f"v_mov_b32 v{24+v}, v{d+v}")
        for v in range(4): A(f"v_permlane32_swap_b32 v{24+v}, v{d+v}")
        for v in range(4): A(f"v_add_f32 v{d+v}, v{d+v}, v{24+v}")
    def wrow_offsets():
        A("""v_lshrrev_b32 v10, 4, v1
             v_mul_u32_u24 v6, 1152, v10
             v_and_b32 v10, 15, v1
             v_lshl_add_u32 v6, v10, 4, v6
             v_mov_b32 v7, 0x40000000
             v_cmp_gt_u32 vcc, 8, v10
             v_cndmask_b32 v7, v7, v6, vcc""")
    def wrow_load(r, jj, srdn, soff):
        A(f"buffer_load_dwordx4 {q4(r)}, {'v7' if jj==4 else 'v6'}, s[{srdn}:{srdn+3}], {soff} offen offset:{jj*256} {WPOL}")
    def publish(accbase, region, prod_s):
        A(f"""v_lshrrev_b32 v10, 4, v1
              v_and_b32 v11, 7, v1
              v_lshl_add_u32 v10, v10, 3, v11
              v_lshlrev_b32 v10, 12, v10
              s_lshl_b32 s52, {prod_s}, 4
              v_add_u32 v12, s52, v10""")
        return
    def publish_stores(accbase, region):
        A("s_mov_b32 exec_lo, 0x00ff00ff\ns_mov_b32 exec_hi, 0x00ff00ff")
        for jj in range(5):
            if jj==4: A("s_mov_b32 exec_hi, 0")
            A(f"s_mov_b32 s53, {region+jj*131072}")
            A(f"buffer_store_dwordx4 {q4(accbase+4*jj)}, v12, s[40:43], s53 offen sc1")
        A("s_mov_b64 exec, -1")
    def pick4(dst, a):
        A(f"""v_cmp_eq_u32 vcc, 1, v8
              v_cndmask_b32 {dst}, v{a}, v{a+1}, vcc
              v_cmp_eq_u32 vcc, 2, v8
              v_cndmask_b32 {dst}, {dst}, v{a+2}, vcc
              v_cmp_eq_u32 vcc, 3, v8
              v_cndmask_b32 {dst}, {dst}, v{a+3}, vcc""")

    A(f"""s_cmp_ge_u32 s2, 256
          s_cbranch_scc1 L_end
          s_load_dwordx16 s[4:19], s[0:1], 0
          s_load_dwordx8 s[20:27], s[0:1], 64
          v_lshrrev_b32 v2, 6, v0
          v_and_b32 v1, 63, v0
          v_readfirstlane_b32 s3, v2
          s_lshr_b32 s28, s2, 4
          s_and_b32 s29, s2, 15
          s_cmp_eq_u32 s3, 4
          s_cbranch_scc1 L_waveA
          s_cmp_eq_u32 s3, 5
          s_cbranch_scc1 L_waveB""")
    TB=64
    def KR(j,i): return TB+32*j+4*i
    def VR(j,i): return TB+32*j+16+4*i
    A(f"""v_and_b32 v10, 3, v1
          v_bfe_u32 v11, v1, 2, 2
          v_lshl_add_u32 v10, v10, 2, v11
          v_lshlrev_b32 v2, 8, v10
          v_lshrrev_b32 v10, 4, v1
          v_lshl_add_u32 v2, v10, 4, v2
          v_lshlrev_b32 v3, 4, v1
          s_lshl_b32 s30, s29, 2
          s_add_u32 s30, s30, s3
          s_mul_i32 s70, s30, {C*4096}
          s_lshl_b32 s52, s28, 24
          s_waitcnt lgkmcnt(0)""")
    srd(32,6,LIM,"s52"); srd(36,8,LIM,"s52")
    def ldK(j):
        for i in range(4): A(f"buffer_load_dwordx4 {q4(KR(j,i))}, v4, s[32:35], 0 offen offset:{64*i} {KPOL}")
    def ldV(j):
        for i in range(4): A(f"buffer_load_dwordx4 {q4(VR(j,i))}, v5, s[36:39], 0 offen offset:{1024*i} {KPOL}")
    def voffs(j): A(f"v_add_u32 v4, s{60+j}, v2\nv_add_u32 v5, s{60+j}, v3")
    for j in range(R):
        if j%C==0: A(f"s_mov_b32 s{60+j}, s70\ns_add_u32 s70, s70, {64*C*4096}")
        else: A(f"s_add_u32 s{60+j}, s{59+j}, 4096")
        voffs(j); ldK(j); ldV(j)
    srd(40,26,WSZ)
    stamp(0)
    masks()
    A(f"""s_mov_b32 s71, {R//C}
          s_mov_b32 s72, 0
          s_lshl_b32 s52, s28, 8
          s_add_u32 s74, s26, s52
          s_addc_u32 s75, s27, 0
          s_mov_b32 s66, {f32(128**-0.5)}
          s_mov_b32 s67, s66
          s_mov_b32 s68, {f32(LOG2E)}
          s_mov_b32 s69, 0xffff0000
          v_mov_b32 v6, {f32(-1e30)}
          v_mov_b32 v7, {f32(1e30*LOG2E)}
          v_mov_b32 v8, 0
          v_mov_b32 v9, 0
          v_mov_b32 v28, 0
          v_mov_b32 v29, 0
          v_mov_b32 v30, 0
          v_mov_b32 v31, 0
          v_bfe_u32 v10, v1, 3, 1
          v_lshlrev_b32 v10, 8, v10
          v_lshrrev_b32 v11, 4, v1
          v_lshl_add_u32 v10, v11, 4, v10
          s_barrier""")
    for i in range(4): A(f"ds_read_b128 {q4(48+4*i)}, v10 offset:{L_Q+64*i}")
    A("s_waitcnt lgkmcnt(0)")
    stamp(1)
    A(".p2align 6\nL_loop:")
    for j in range(R):
        A(f"s_cmp_ge_u32 s{60+j}, {LIM}\ns_cbranch_scc1 L_sexit")
        A(f"s_waitcnt vmcnt({8*R-4})")
        for i in range(4):
            A(f"v_mfma_f32_16x16x32_bf16 v[20:23], {q4(KR(j,i))}, {q4(48+4*i)}, {'0' if i==0 else 'v[20:23]'}")
        if j%C==0:
            na=lab("na")
            A(f"""s_waitcnt lgkmcnt(0)
                  s_mul_i32 s52, s72, {C*4096}
                  s_add_u32 s52, s52, {NS*64*C*4096}
                  s_min_u32 s52, s52, {LIM}
                  s_cmp_lt_u32 s71, {NS}
                  s_cselect_b32 s{60+j}, s70, s52
                  s_add_u32 s70, s70, {64*C*4096}
                  s_add_u32 s71, s71, 1
                  s_cmp_lt_u32 s71, {NS}
                  s_cbranch_scc1 {na}
                  s_cmp_ge_u32 s{60+j}, {LIM}
                  s_cbranch_scc1 {na}
                  s_mov_b32 s72, 1
                  s_atomic_add s72, s[74:75], 0x0 glc
                  {na}:""")
        else: A(f"s_add_u32 s{60+j}, s{59+j}, 4096")
        voffs(j); ldK(j)
        A("s_nop 1")
        A("""v_cvt_pk_bf16_f32 v12, v20, v21
             v_cvt_pk_bf16_f32 v13, v22, v23
             v_lshlrev_b32 v24, 16, v12
             v_and_b32 v25, s69, v12
             v_lshlrev_b32 v26, 16, v13
             v_and_b32 v27, s69, v13
             v_pk_mul_f32 v[24:25], v[24:25], s[66:67]
             v_pk_mul_f32 v[26:27], v[26:27], s[66:67]
             v_cvt_pk_bf16_f32 v12, v24, v25
             v_cvt_pk_bf16_f32 v13, v26, v27
             v_lshlrev_b32 v24, 16, v12
             v_and_b32 v25, s69, v12
             v_lshlrev_b32 v26, 16, v13
             v_and_b32 v27, s69, v13
             v_max3_f32 v10, v24, v25, v26
             v_max_f32 v10, v10, v27
             v_cmp_gt_f32 vcc, v10, v6""")
        A(f"s_cbranch_vccnz L_rare{j}\nL_back{j}:")
        for v in range(4): A(f"v_fma_f32 v{24+v}, v{24+v}, s68, v7")
        for v in range(4): A(f"v_exp_f32 v{24+v}, v{24+v}")
        A("v_cvt_pk_bf16_f32 v20, v24, v24\nv_cvt_pk_bf16_f32 v21, v25, v25")
        A("v_pk_add_f32 v[8:9], v[8:9], v[24:25]")
        A("v_cvt_pk_bf16_f32 v22, v26, v26\nv_cvt_pk_bf16_f32 v23, v27, v27")
        A("v_pk_add_f32 v[8:9], v[8:9], v[26:27]")
        for v in range(4): bset(v, f"v{20+v}")
        A(f"s_waitcnt vmcnt({8*R-4})")
        for v in range(4):
            A(f"v_mfma_f32_16x16x32_bf16 v[28:31], {q4(VR(j,v))}, {B(v)}, v[28:31]")
        ldV(j)
    A("s_branch L_loop")
    for j in range(R):
        A(f"""L_rare{j}:
              v_mov_b32 v11, v10
              v_permlane16_swap_b32 v10, v11
              v_max_f32 v10, v10, v11
              v_mov_b32 v11, v10
              v_permlane32_swap_b32 v10, v11
              v_max3_f32 v6, v10, v11, v6
              v_mul_f32 v11, s68, v6
              v_add_f32 v10, v7, v11
              v_exp_f32 v10, -v10
              v_sub_f32 v7, 0, v11
              v_mul_f32 v28, v28, v10
              v_mul_f32 v29, v29, v10
              v_mul_f32 v30, v30, v10
              v_mul_f32 v31, v31, v10
              v_mul_f32 v8, v8, v10
              v_mul_f32 v9, v9, v10
              s_branch L_back{j}""")
    A(f"""L_sexit:
          v_add_f32 v9, v8, v9
          v_sub_f32 v8, 0, v7
          v_mov_b32 v11, v9
          s_lshl_b32 s52, s28, 6
          s_add_u32 s52, s52, s30
          s_lshl_b32 s53, s52, 10
          s_add_u32 s53, s53, {P1}
          v_permlane16_swap_b32 v9, v11
          s_nop 3
          buffer_store_dwordx4 v[28:31], v3, s[40:43], s53 offen sc1
          v_add_f32 v9, v9, v11
          v_mov_b32 v11, v9
          s_lshl_b32 s52, s52, 4
          s_add_u32 s52, s52, {ML}
          v_permlane32_swap_b32 v9, v11
          v_add_f32 v9, v9, v11
          s_mov_b64 exec, 0x101
          buffer_store_dwordx2 v[8:9], v1, s[40:43], s52 offen sc1
          s_mov_b64 exec, -1""")
    stamp(2)
    A("s_barrier\ns_endpgm")

    WQ=64; WO=136; XV=216
    A(f"""L_waveA:
          v_lshlrev_b32 v3, 4, v1
          v_lshrrev_b32 v10, 3, v1
          v_lshlrev_b32 v2, 13, v10
          v_and_b32 v11, 7, v1
          v_lshl_add_u32 v2, v11, 4, v2
          s_lshr_b32 s30, s29, 2
          s_and_b32 s31, s29, 3
          s_mul_i32 s52, s30, {144*8192}
          s_lshl_b32 s53, s28, 9
          s_add_u32 s52, s52, s53
          s_lshl_b32 s53, s31, 7
          s_add_u32 s52, s52, s53
          s_waitcnt lgkmcnt(0)""")
    srd(32,4,1152); srd(36,10,576*8192)
    A("buffer_load_dwordx4 v[48:51], v3, s[32:35], 0 offen\nbuffer_load_dwordx4 v[52:55], v3, s[32:35], 0 offen offset:1024")
    for n in range(18):
        A(f"buffer_load_dwordx4 {q4(WQ+4*n)}, v2, s[36:39], s52 offen {WPOL}")
        if n<17: A("s_add_u32 s52, s52, 65536")
    srd(40,26,WSZ); srd(44,24,256)
    stamp(0)
    A(f"""v_and_b32 v8, 3, v1
          s_lshr_b32 s52, s2, 5
          s_lshl_b32 s52, s52, 7
          s_bfe_u32 s53, s2, 0x20003
          s_lshl_b32 s53, s53, 5
          s_add_u32 s52, s52, s53
          s_and_b32 s53, s2, 7
          s_add_u32 s52, s52, s53
          s_lshl_b32 s52, s52, 1
          v_lshl_add_u32 v9, v8, 4, s52
          buffer_load_ushort v56, v9, s[32:35], 0 offen""")
    A(f"""v_mov_b32 v60, -1
          v_mov_b32 v61, -1
          v_mov_b32 v62, -1
          v_mov_b32 v63, -1
          s_lshl_b32 s52, s2, 12
          s_add_u32 s53, s52, {P1}""")
    for i in range(4): A(f"buffer_store_dwordx4 v[60:63], v3, s[40:43], s53 offen offset:{1024*i} sc1")
    A(f"""s_lshl_b32 s54, s2, 6
          s_add_u32 s54, s54, {ML}
          s_mov_b64 exec, 15
          buffer_store_dwordx4 v[60:63], v3, s[40:43], s54 offen sc1
          s_mov_b64 exec, -1
          s_cmp_ge_u32 s2, 144
          s_cbranch_scc1 L_noinbox
          s_add_u32 s53, s52, {P2}
          s_add_u32 s54, s52, {PG}""")
    for i in range(4): A(f"buffer_store_dwordx4 v[60:63], v3, s[40:43], s53 offen offset:{1024*i} sc1")
    for i in range(3): A(f"buffer_store_dwordx4 v[60:63], v3, s[40:43], s54 offen offset:{1024*i} sc1")
    A(f"""L_noinbox:
          s_cmp_lg_u32 s29, 0
          s_cbranch_scc1 L_noctr
          v_mov_b32 v57, 0
          s_lshl_b32 s53, s28, 8
          s_mov_b64 exec, 1
          buffer_store_dword v57, v3, s[40:43], s53 offen sc1
          s_mov_b64 exec, -1
          L_noctr:""")
    masks()
    A("s_waitcnt vmcnt(24)")
    XF=224
    for i in range(8):
        A(f"v_lshlrev_b32 v{XF+2*i}, 16, v{48+i}\nv_and_b32 v{XF+2*i+1}, 0xffff0000, v{48+i}")
    A(f"v_add_f32 v10, v{XF}, v{XF+1}")
    for i in range(2,16): A(f"v_add_f32 v10, v10, v{XF+i}")
    wavesum_last_row(["v10"])
    A(f"""v_readlane_b32 s54, v10, 63
          v_mov_b32 v11, {f32(1/576)}
          v_mul_f32 v12, s54, v11""")
    A(f"v_sub_f32 v13, v{XF}, v12\nv_mul_f32 v10, v13, v13")
    for i in range(1,8): A(f"v_sub_f32 v13, v{XF+i}, v12\nv_fmac_f32 v10, v13, v13")
    A(f"v_sub_f32 v13, v{XF+8}, v12\nv_mul_f32 v18, v13, v13")
    for i in range(9,16): A(f"v_sub_f32 v13, v{XF+i}, v12\nv_fmac_f32 v18, v13, v13")
    A("v_cmp_gt_u32 vcc, 8, v1\nv_cndmask_b32 v18, 0, v18, vcc\nv_add_f32 v10, v10, v18")
    wavesum_last_row(["v10"])
    A(f"""v_readlane_b32 s54, v10, 63
          v_mul_f32 v13, s54, v11""")
    rne("v12","v12"); rne("v13","v13")
    A(f"v_add_f32 v13, {f32(1e-5)}, v13"); rne("v13","v13")
    A("v_sqrt_f32 v13, v13"); rne("v13","v13")
    A("v_rcp_f32 v18, v13")
    for i in range(0,16,2):
        a,b=XF+i,XF+i+1
        A(f"""v_sub_f32 v{a}, v{a}, v12
              v_sub_f32 v{b}, v{b}, v12
              v_cvt_pk_bf16_f32 v10, v{a}, v{b}
              v_lshlrev_b32 v{a}, 16, v10
              v_and_b32 v{b}, 0xffff0000, v10""")
        for r in (a,b):
            A(f"""v_mul_f32 v10, v{r}, v18
                  v_fma_f32 v11, -v10, v13, v{r}
                  v_fma_f32 v10, v11, v18, v10
                  v_cvt_pk_bf16_f32 v{r}, v10, v10""")
    A("v_lshlrev_b32 v10, 2, v1")
    for e in range(8): A(f"ds_write_b32 v10, v{XF+e} offset:{L_XN+e*288}")
    A("s_mov_b64 exec, 0xff")
    for e in range(8): A(f"ds_write_b32 v10, v{XF+8+e} offset:{L_XN+e*288+256}")
    A(f"""s_mov_b64 exec, -1
          v_lshrrev_b32 v10, 3, v1
          v_mul_u32_u24 v10, 288, v10
          s_mul_i32 s52, s30, 72
          v_add_u32 v10, s52, v10
          s_waitcnt lgkmcnt(0)""")
    for i in range(9): A(f"ds_read_b64 v[{XV+2*i}:{XV+2*i+1}], v10 offset:{L_XN+8*i}")
    A("s_waitcnt vmcnt(6) lgkmcnt(0)")
    stamp(1)
    for n in range(18):
        bset(n&3, f"v{XV+n}")
        if n>0: A(f"v_mfma_f32_16x16x32_bf16 v[20:23], {q4(WQ+4*(n-1))}, {B((n-1)&3)}, {'0' if n==1 else 'v[20:23]'}")
    A(f"v_mfma_f32_16x16x32_bf16 v[20:23], {q4(WQ+4*17)}, {B(17&3)}, v[20:23]")
    A(f"""v_bfe_u32 v10, v1, 4, 1
          v_and_b32 v11, 7, v1
          v_lshl_add_u32 v10, v10, 3, v11
          v_lshlrev_b32 v10, 4, v10
          s_lshl_b32 s52, s2, 8
          s_add_u32 s52, s52, {QP}""")
    merge_halves(20)
    A(f"""s_mov_b64 exec, 0x00ff00ff
          buffer_store_dwordx4 v[20:23], v10, s[40:43], s52 offen sc1
          s_mov_b64 exec, 1
          v_mov_b32 v11, 1
          s_lshl_b32 s53, s28, 2
          v_mov_b32 v13, s53
          s_waitcnt vmcnt(0)
          buffer_atomic_add v11, v13, s[44:47], 0 offen sc1
          s_mov_b64 exec, -1""")
    stamp(2)
    pollflags(1,None)
    A(f"""s_lshl_b32 s52, s28, 12
          s_add_u32 s52, s52, {QP}""")
    for rb in range(4): A(f"buffer_load_dwordx4 {q4(WQ+4*rb)}, v3, s[40:43], s52 offen offset:{1024*rb} sc1")
    A(f"""v_lshrrev_b32 v10, 3, v1
          v_lshlrev_b32 v10, 5, v10
          v_and_b32 v11, 7, v1
          v_add_lshl_u32 v10, v10, v11, 1
          s_waitcnt vmcnt(0)""")
    for v in range(4):
        A(f"v_add_f32 v{20+v}, v{WQ+v}, v{WQ+4+v}\nv_add_f32 v{24+v}, v{WQ+8+v}, v{WQ+12+v}")
    for v in range(4): A(f"v_add_f32 v{20+v}, v{20+v}, v{24+v}")
    for v in range(4): A(f"v_cvt_pk_bf16_f32 v{20+v}, v{20+v}, v{20+v}")
    for v in range(4): A(f"ds_write_b16 v10, v{20+v} offset:{L_Q+16*v}")
    A("s_waitcnt lgkmcnt(0)\ns_barrier")
    stamp(3)
    srd(36,12,4096*1152)
    wrow_offsets()
    A(f"""s_lshr_b32 s54, s29, 3
          s_bfe_u32 s55, s29, 0x20001
          s_and_b32 s56, s29, 1
          s_lshl_b32 s52, s28, 8
          s_lshl_b32 s53, s54, 7
          s_add_u32 s52, s52, s53
          s_lshl_b32 s53, s55, 5
          s_add_u32 s52, s52, s53
          s_lshl_b32 s53, s56, 2
          s_add_u32 s52, s52, s53
          s_mul_i32 s52, s52, 1152""")
    for n in range(4):
        for jj in range(5): wrow_load(WO+4*(5*n+jj), jj, 36, "s52")
        if n<3: A(f"s_add_u32 s52, s52, {8*1152}")
    A(f"""s_lshl_b32 s52, s55, 4
          s_lshl_b32 s53, s54, 3
          s_add_u32 s52, s52, s53
          s_lshl_b32 s57, s56, 2
          s_add_u32 s52, s52, s57
          s_lshl_b32 s52, s52, 4
          v_lshrrev_b32 v10, 4, v1
          v_and_b32 v11, 15, v1
          v_lshlrev_b32 v4, 10, v11
          v_lshl_add_u32 v4, v10, 4, v4
          v_add_u32 v4, s52, v4
          v_lshl_add_u32 v5, v11, 4, s53
          s_lshl_b32 s52, s28, 16
          s_add_u32 s60, s52, {P1}
          s_add_u32 s61, s60, 16384
          s_add_u32 s62, s60, 32768
          s_add_u32 s63, s60, 49152
          s_lshl_b32 s52, s28, 10
          s_add_u32 s64, s52, {ML}
          v_lshlrev_b32 v13, 2, v1""")
    publish(0,P2,"s2")
    pollflags(16,None)
    srd(48,22,1152)
    A(f"""s_cmp_ge_u32 s2, 144
          s_cbranch_scc1 L_noglusum
          s_lshl_b32 s52, s2, 12
          s_add_u32 s65, s52, {P2}
          s_add_u32 s52, s52, {PG}
          v_mov_b32 v2, 0x40000000
          v_cmp_gt_u32 vcc, 16, v1
          v_cndmask_b32 v2, v2, v3, vcc""")
    def gl():
        for rr in range(3): A(f"buffer_load_dwordx4 {q4(WQ+4*rr)}, {'v2' if rr==2 else 'v3'}, s[40:43], s52 offen offset:{1024*rr} sc1")
    poll(gl,[f"v{WQ+i}" for i in range(12)],SLEEPG)
    for v in range(4): A(f"v_add_f32 v{20+v}, v{WQ+v}, v{WQ+4+v}")
    for v in range(4): A(f"v_add_f32 v{20+v}, v{20+v}, v{WQ+8+v}")
    wavesum_last_row([f"v{20+v}" for v in range(4)])
    pick4("v57",20); rne("v57","v57")
    A("v_lshlrev_b32 v56, 16, v56")
    A("L_noglusum:")
    stamp(4)
    A("s_barrier")
    stamp(5)
    H1=WQ; HM=WQ+16
    def h1():
        for rr in range(4): A(f"buffer_load_dwordx4 {q4(H1+4*rr)}, v4, s[40:43], s{60+rr} offen sc1")
        for rr in range(4): A(f"buffer_load_dwordx2 v[{HM+2*rr}:{HM+2*rr+1}], v5, s[40:43], s64 offen offset:{256*rr} sc1")
    poll(h1,[f"v{H1+i}" for i in range(24)],SLEEP1)
    stamp(6)
    A(f"v_max3_f32 v10, v{HM}, v{HM+2}, v{HM+4}\nv_max_f32 v10, v10, v{HM+6}")
    rowsum(["v10"],"max")
    for rr in range(4): A(f"v_sub_f32 v{HM+2*rr}, v{HM+2*rr}, v10")
    for rr in range(4): A(f"v_exp_f32 v{HM+2*rr}, v{HM+2*rr}")
    A(f"v_mul_f32 v24, v{HM}, v{HM+1}")
    for v in range(4): A(f"v_mul_f32 v{20+v}, v{HM}, v{H1+v}")
    for rr in range(1,4):
        A(f"v_fmac_f32 v24, v{HM+2*rr}, v{HM+2*rr+1}")
        for v in range(4): A(f"v_fmac_f32 v{20+v}, v{HM+2*rr}, v{H1+4*rr+v}")
    rowsum(["v24","v20","v21","v22","v23"])
    A("v_rcp_f32 v24, v24")
    for v in range(4): A(f"v_mul_f32 v{20+v}, v{20+v}, v24")
    for v in range(4): A(f"v_cvt_pk_bf16_f32 v{20+v}, v{20+v}, v{20+v}")
    YA=WQ+32
    for n in range(4): bset(n,f"v{20+n}")
    for n in range(4):
        for jj in range(5):
            A(f"v_mfma_f32_16x16x32_bf16 {q4(YA+4*jj)}, {q4(WO+4*(5*n+jj))}, {B(n)}, {'0' if n==0 else q4(YA+4*jj)}")
    publish_stores(YA,P2)
    stamp(7)
    A("s_cmp_ge_u32 s2, 144\ns_cbranch_scc1 L_end")
    def h2():
        for rr in range(4): A(f"buffer_load_dwordx4 {q4(H1+4*rr)}, v3, s[40:43], s65 offen offset:{1024*rr} sc1")
    poll(h2,[f"v{H1+i}" for i in range(16)],SLEEP1)
    for v in range(4): A(f"v_add_f32 v{20+v}, v{H1+v}, v{H1+4+v}\nv_add_f32 v{24+v}, v{H1+8+v}, v{H1+12+v}")
    for v in range(4): A(f"v_add_f32 v{20+v}, v{20+v}, v{24+v}")
    wavesum_last_row([f"v{20+v}" for v in range(4)])
    pick4("v10",20); rne("v10","v10")
    A("v_add_f32 v10, v56, v10"); rne("v10","v10")
    A("""v_add_f32 v10, v10, v57
         v_cvt_pk_bf16_f32 v10, v10, v10
         s_mov_b32 exec_lo, 0
         s_mov_b32 exec_hi, 0xf0000000
         buffer_store_short v10, v9, s[48:51], 0 offen""")
    if PROF:
        A("s_mov_b64 exec, -1\ns_mov_b32 s3, 5"); stamp(7)
    A("s_endpgm")

    RG=64; NR=40; XB=224; YB=232
    A(f"""L_waveB:
          s_cmp_ge_u32 s29, 9
          s_cbranch_scc1 L_end
          s_lshr_b32 s52, s28, 1
          s_mul_i32 s52, s52, 9
          s_add_u32 s52, s52, s29
          s_lshl_b32 s52, s52, 1
          s_and_b32 s53, s28, 1
          s_add_u32 s30, s52, s53
          v_lshrrev_b32 v10, 3, v1
          v_mul_u32_u24 v2, 9216, v10
          v_and_b32 v11, 3, v1
          v_lshl_add_u32 v2, v11, 4, v2
          s_lshl_b32 s52, s30, 6
          v_add_u32 v2, s52, v2
          v_bfe_u32 v11, v1, 2, 1
          v_cmp_eq_u32 vcc, 1, v11
          s_mov_b32 s54, {8*9216}
          s_mov_b32 s55, 0
          s_waitcnt lgkmcnt(0)
          v_mov_b32 v4, s16
          v_mov_b32 v5, s17
          v_mov_b32 v10, s18
          v_mov_b32 v11, s19
          v_cndmask_b32 v4, v4, v10, vcc
          v_cndmask_b32 v5, v5, v11, vcc
          v_add_co_u32 v4, vcc, v4, v2
          v_addc_co_u32 v5, vcc, 0, v5, vcc""")
    def gu_load(k):
        A(f"global_load_dwordx4 {q4(RG+4*(k%NR))}, v[4:5], off {WPOL}")
        if k<71: A("v_lshl_add_u64 v[4:5], v[4:5], 0, s[54:55]")
    def dn_load(k):
        n,jj=divmod(k-72,5)
        if jj==0 and n>0: A(f"s_add_u32 s56, s56, {4*1152}")
        wrow_load(RG+4*(k%NR), jj, 36, "s56")
    def anyload(k):
        if k<72: gu_load(k)
        elif k<112: dn_load(k)
    for k in range(NR): gu_load(k)
    srd(36,20,4608*1152); srd(40,26,WSZ); srd(44,24,256)
    stamp(0)
    masks(); wrow_offsets()
    A(f"""s_mul_i32 s56, s30, {32*1152}
          v_lshrrev_b32 v10, 3, v1
          v_mul_u32_u24 v9, 288, v10
          s_barrier""")
    A(f"ds_read_b128 {q4(XB)}, v9 offset:{L_XN}")
    for k in range(72):
        t,i=divmod(k,4)
        if i==0:
            if t<17: A(f"ds_read_b128 {q4(XB+4*((t+1)&1))}, v9 offset:{L_XN+16*(t+1)}\ns_waitcnt lgkmcnt(1)")
            else: A("s_waitcnt lgkmcnt(0)")
        bset(k&3, f"v{XB+4*(t&1)+i}")
        A(f"s_waitcnt vmcnt({NR-1})")
        A(f"v_mfma_f32_16x16x32_bf16 v[20:23], {q4(RG+4*(k%NR))}, {B(k&3)}, {'0' if k==0 else 'v[20:23]'}")
        anyload(k+NR)
    merge_halves(20)
    for v in range(4): A(f"v_mov_b32 v{24+v}, v{20+v}")
    for v in range(4): A(f"v_permlane16_swap_b32 v{20+v}, v{24+v}")
    for v in range(4): rne(f"v{20+v}",f"v{20+v}"); rne(f"v{24+v}",f"v{24+v}")
    for v in range(4): A(f"v_mul_f32 v{20+v}, {f32(-LOG2E)}, v{20+v}")
    for v in range(4): A(f"v_exp_f32 v{20+v}, v{20+v}")
    for v in range(4): A(f"v_add_f32 v{20+v}, 1.0, v{20+v}")
    for v in range(4): A(f"v_rcp_f32 v{20+v}, v{20+v}")
    for v in range(4): rne(f"v{20+v}",f"v{20+v}")
    for v in range(4): A(f"v_mul_f32 v{20+v}, v{20+v}, v{24+v}")
    for v in range(4): A(f"v_cvt_pk_bf16_f32 v{20+v}, v{20+v}, v{20+v}")
    A(f"""v_and_b32 v10, 3, v1
          v_lshlrev_b32 v10, 5, v10
          v_bfe_u32 v11, v1, 2, 1
          v_lshl_add_u32 v10, v11, 2, v10
          s_mov_b64 exec, 0xff""")
    for v in range(4): A(f"ds_write_b32 v10, v{20+v} offset:{L_H+8*v}")
    A(f"""s_mov_b64 exec, -1
          v_lshrrev_b32 v10, 4, v1
          v_lshlrev_b32 v10, 5, v10
          s_waitcnt lgkmcnt(0)
          ds_read_b128 {q4(XB)}, v10 offset:{L_H}
          ds_read_b128 {q4(XB+4)}, v10 offset:{L_H+16}
          v_lshlrev_b32 v13, 2, v1""")
    publish(0,PG,"s30")
    A("s_waitcnt vmcnt(0) lgkmcnt(0)")
    for n in range(8):
        bset(n&3, f"v{XB+n}")
        for jj in range(5):
            k=72+5*n+jj
            A(f"v_mfma_f32_16x16x32_bf16 {q4(YB+4*jj)}, {q4(RG+4*(k%NR))}, {B(n&3)}, {'0' if n==0 else q4(YB+4*jj)}")
    pollflags(16,None)
    publish_stores(YB,PG)
    stamp(1)
    A("L_end:\ns_endpgm")

    s=HDR
    s+="; @launch grid=(256,1,1) block=(384,1,1) lds=4096\n"
    s+=f""".amdgcn_target "amdgcn-amd-amdhsa--gfx950"
.text
.globl {NAME}_kernel
.p2align 8
.type {NAME}_kernel,@function
{NAME}_kernel:
"""
    s+=A.text()
    s+=f""".section .rodata,"a"
.p2align 6
.amdhsa_kernel {NAME}_kernel
  .amdhsa_next_free_vgpr 256
  .amdhsa_next_free_sgpr 96
  .amdhsa_accum_offset 256
  .amdhsa_group_segment_fixed_size 0
  .amdhsa_kernarg_size 96
  .amdhsa_user_sgpr_count 2
  .amdhsa_user_sgpr_kernarg_segment_ptr 1
  .amdhsa_system_sgpr_workgroup_id_x 1
  .amdhsa_float_denorm_mode_32 3
.end_amdhsa_kernel
"""
    return s
if __name__=="__main__":
    kw={}
    out=f"cdna_kernels/{NAME}.s"
    for a in sys.argv[1:]:
        k,v=a.split("=")
        if k=="out": out=v
        else:
            try: v=int(v)
            except: pass
            kw[k]=v
    open(out,"w").write(build(**kw))
```
